```python
import torch

def _softmax(x, axis=-1):
    return torch.softmax(x, dim=axis)
def _gelu(x):
    return torch.nn.functional.gelu(x, approximate="tanh")
def _silu(x):
    return torch.nn.functional.silu(x)
def _sigmoid(x):
    return torch.sigmoid(x)
def _layernorm(x, axis=-1, eps=1e-5):
    m = x.mean(dim=axis, keepdim=True)
    v = x.var(dim=axis, keepdim=True, unbiased=False)
    return (x - m) / torch.sqrt(v + eps)
def _scatter_add(tgt, idx, src, axis=0):
    return tgt.clone().index_add_(axis, idx, src)
def _segment_sum(src, seg, n):
    out = torch.zeros((n,) + src.shape[1:], dtype=src.dtype)
    return out.index_add_(0, seg, src)
def _pad(x, pw):
    flat = tuple(v for pair in reversed(pw) for v in pair)
    return torch.nn.functional.pad(x, flat)

kernel_name = 'recurrent_scan__grouped_kv_mqa__dense_activation_squared_relu__prompt'

def setup_inputs():

    _w = (lambda a: (lambda t: t.to(torch.bfloat16) if t.is_floating_point() else t)(torch.as_tensor(a)))
    def _A_setup():
        B, S, D, H = 1, 2048, 1024, 32
        Dh = D // H
        return {
            "x": _w((lambda *s: torch.randn(*s, dtype=torch.bfloat16) * 0.05)(B, S, D)),
            "wq": _w((lambda *s: torch.randn(*s, dtype=torch.bfloat16) * 0.05)(D, H * Dh)),
            "wk": _w((lambda *s: torch.randn(*s, dtype=torch.bfloat16) * 0.05)(D, Dh)),
            "wv": _w((lambda *s: torch.randn(*s, dtype=torch.bfloat16) * 0.05)(D, Dh)),
            "wo": _w((lambda *s: torch.randn(*s, dtype=torch.bfloat16) * 0.05)(H * Dh, D)),
        }
    _A_in = _A_setup()

    def _B_setup():
        B, S, D, F = 1, 2048, 1024, 3584
        return {
            "x": _w((lambda *s: torch.randn(*s, dtype=torch.bfloat16) * 0.05)(B, S, D)),
            "w1": _w((lambda *s: torch.randn(*s, dtype=torch.bfloat16) * 0.05)(D, F)),
            "b1": _w((lambda *s: torch.randn(*s, dtype=torch.bfloat16) * 0.8)(F)),
            "w2": _w((lambda *s: torch.randn(*s, dtype=torch.bfloat16) * 0.05)(F, D)),
            "b2": _w((lambda *s: torch.randn(*s, dtype=torch.bfloat16) * 6.4)(D)),
        }
    _B_in = _B_setup()

    return {
        "A_x": _A_in["x"],
        "A_wq": _A_in["wq"],
        "A_wk": _A_in["wk"],
        "A_wv": _A_in["wv"],
        "A_wo": _A_in["wo"],
        "B_x": _B_in["x"],
        "B_w1": _B_in["w1"],
        "B_b1": _B_in["b1"],
        "B_w2": _B_in["w2"],
        "B_b2": _B_in["b2"],
    }

def reference(A_x, A_wq, A_wk, A_wv, A_wo, B_x, B_w1, B_b1, B_w2, B_b2):
    def _A_ref(x, wq, wk, wv, wo):
        B, S, D = x.shape
        H = 32
        Dh = D // H
        q = (lambda x, *d: x.permute(*d))((x @ wq).reshape(B, S, H, Dh), 0, 2, 1, 3)
        k = x @ wk
        v = x @ wv
        scores = torch.einsum("bhqd,bkd->bhqk", q, k) * (Dh ** -0.5)
        p = _softmax(scores, axis=-1)
        o = torch.einsum("bhqk,bkd->bhqd", p, v)
        return (lambda x, *d: x.permute(*d))(o, 0, 2, 1, 3).reshape(B, S, H * Dh) @ wo

    def _B_ref(x, w1, b1, w2, b2):
        h = torch.einsum("bsd,df->bsf", x, w1) + b1
        zero = torch.zeros_like(h)
        r = torch.where(h > zero, h, zero)
        h = r * r
        out = torch.einsum("bsf,fd->bsd", h, w2) + b2
        return out

    x = A_x
    xn = _layernorm(x, axis=-1)
    s = _A_ref(xn, A_wq, A_wk, A_wv, A_wo)
    g = _silu(_B_ref(xn, B_w1, B_b1, B_w2, B_b2))
    return x + s * g
```

```python
import re

_REG = re.compile(r"^(-)?(\|)?(abs\()?([vas])(\d+|\[(\d+):(\d+)\])\)?\|?$")

TRANS = ("v_exp_", "v_log_", "v_rcp_", "v_rsq_", "v_sqrt_", "v_sin_", "v_cos_")


def regs_of(op):
    op = op.strip()
    if op in ("vcc",):
        return {("s", 106), ("s", 107)}
    if op == "vcc_lo":
        return {("s", 106)}
    if op == "vcc_hi":
        return {("s", 107)}
    if op == "exec":
        return {("s", 126), ("s", 127)}
    if op == "m0":
        return {("s", 124)}
    m = _REG.match(op)
    if not m:
        return set()
    kind = m.group(4)
    if m.group(6) is not None:
        return {(kind, i) for i in range(int(m.group(6)), int(m.group(7)) + 1)}
    return {(kind, int(m.group(5)))}


def split_ops(s):
    out, depth, cur = [], 0, ""
    for ch in s:
        if ch in "[(":
            depth += 1
        if ch in "])":
            depth -= 1
        if ch == "," and depth == 0:
            out.append(cur.strip())
            cur = ""
        else:
            cur += ch
    if cur.strip():
        out.append(cur.strip())
    return out


class Inst:
    __slots__ = ("text", "mn", "ops", "rd", "wr", "kind", "passes", "srcc", "srcab", "label", "nop")

    def __init__(self, text):
        self.text = text
        self.label = None
        self.nop = 0
        self.rd, self.wr = set(), set()
        self.srcc, self.srcab = set(), set()
        self.passes = 0
        t = text.split(";")[0].strip()
        if t.endswith(":"):
            self.label = t[:-1]
            self.kind = "label"
            self.mn = ""
            self.ops = []
            return
        if t.startswith(".") or not t:
            self.kind = "dir"
            self.mn = ""
            self.ops = []
            return
        parts = t.split(None, 1)
        mn = parts[0]
        self.mn = mn
        rest = parts[1] if len(parts) > 1 else ""
        ops = split_ops(rest)
        clean = []
        for o in ops:
            clean.append(o.split()[0] if o.split() else o)
        self.ops = clean
        mods = rest
        R = [regs_of(o) for o in clean]

        def U(idx):
            s = set()
            for i in idx:
                if i < len(R):
                    s |= R[i]
            return s

        n = len(R)
        if mn.startswith("v_mfma"):
            self.kind = "mfma"
            self.wr = U([0])
            self.srcab = U([1, 2])
            self.srcc = U([3])
            self.rd = self.srcab | self.srcc
            self.passes = 8 if "32x32" in mn else 4
        elif mn.startswith("v_"):
            self.kind = "valu"
            if mn.startswith(TRANS):
                self.kind = "trans"
            if mn.startswith("v_dot"):
                self.kind = "dot"
            if mn.startswith("v_cmp"):
                self.wr = U([0])
                self.rd = U(range(1, n))
                if mn.startswith("v_cmpx"):
                    self.wr |= regs_of("exec")
            elif "permlane" in mn and "swap" in mn:
                self.kind = "permlane"
                self.wr = U([0, 1])
                self.rd = U([0, 1])
            elif mn.startswith(("v_add_co", "v_sub_co", "v_addc_co", "v_subb_co", "v_subrev_co")):
                self.wr = U([0, 1])
                self.rd = U(range(2, n))
            else:
                self.wr = U([0])
                self.rd = U(range(1, n))
                if mn.startswith(("v_fmac", "v_dot2c", "v_pk_fmac", "v_writelane")) or "sdwa" in mn:
                    self.rd |= U([0])
                if mn.startswith("v_cndmask") and n == 3:
                    self.rd |= regs_of("vcc")
            if mn.startswith(("v_readfirstlane", "v_readlane")):
                self.kind = "readlane"
            if "dpp" in mods or "row_" in mods or "quad_perm" in mods:
                self.kind = "dpp"
        elif mn.startswith("ds_"):
            self.kind = "ds"
            if mn.startswith(("ds_read", "ds_bpermute", "ds_permute", "ds_swizzle")):
                self.wr = U([0])
                self.rd = U(range(1, n))
            else:
                self.rd = U(range(n))
        elif mn.startswith(("buffer_", "global_", "flat_")):
            self.kind = "vmem"
            islds = bool(re.search(r"\blds\b", mods)) or "_lds_" in mn
            if "load" in mn and not islds:
                self.wr = U([0])
                self.rd = U(range(1, n))
            else:
                self.rd = U(range(n))
                if islds:
                    self.rd |= regs_of("m0")
                    self.kind = "dma"
            if "store" in mn and ("x4" in mn or "x3" in mn):
                self.kind = "store128"
        elif mn.startswith("s_"):
            self.kind = "salu"
            if mn == "s_nop":
                self.nop = int(clean[0], 0) + 1
            elif mn.startswith(("s_cmp", "s_cbranch", "s_branch", "s_waitcnt", "s_barrier", "s_endpgm", "s_setprio",
                                "s_sleep", "s_bitcmp")):
                self.rd = U(range(n))
            else:
                self.wr = U([0])
                self.rd = U(range(1, n))
                if "saveexec" in mn:
                    self.wr |= regs_of("exec")
        else:
            raise ValueError("unknown instruction: " + text)


VALU_KINDS = ("valu", "trans", "dot", "permlane", "readlane", "dpp")


def required(p, c):
    need = 0
    pv = p.kind in VALU_KINDS
    cv = c.kind in VALU_KINDS
    cmem = c.kind in ("vmem", "dma", "store128", "ds")
    if p.kind == "mfma":
        n_other = {4: 8, 8: 12}[p.passes]
        if c.kind == "mfma":
            if p.wr & c.srcab:
                need = max(need, n_other)
            if p.wr & c.srcc:
                if p.wr == c.srcc and p.passes == c.passes:
                    pass
                else:
                    need = max(need, {4: 6, 8: 10}[p.passes])
            if p.wr & c.wr and not (p.wr == c.srcc):
                need = max(need, n_other)
        elif cv or cmem:
            if p.wr & (c.rd | c.wr):
                need = max(need, n_other)
            if cv and (p.srcc & c.wr):
                need = max(need, {4: 3, 8: 7}[p.passes])
    if pv:
        vw = {r for r in p.wr if r[0] in "va"}
        sw = {r for r in p.wr if r[0] == "s"}
        if c.kind == "mfma" and vw & c.rd:
            need = max(need, 3 if p.kind == "dot" else 2)
        if c.kind == "mfma" and sw & regs_of("exec"):
            need = max(need, 4)
        if c.kind in ("permlane", "dpp") and vw & c.rd:
            need = max(need, 2)
        if c.kind == "readlane" and vw & c.rd:
            need = max(need, 1)
        if p.kind == "trans" and cv and c.kind != "trans" and vw & c.rd:
            need = max(need, 1)
        if p.kind == "trans" and (cmem or c.kind == "trans") and vw & c.rd:
            need = max(need, 1)
        if p.kind == "dot" and (cv or cmem) and vw & (c.rd | c.wr):
            if not (c.mn == p.mn and not (vw & (regs_of(c.ops[1]) | regs_of(c.ops[2])))):
                need = max(need, 3)
        if "sdwa" in p.mn or "op_sel" in p.text:
            if cv and vw & (c.rd | c.wr):
                need = max(need, 1)
        if sw:
            if c.kind in ("vmem", "dma", "store128") and sw & c.rd:
                need = max(need, 5)
            if cv and sw & c.rd:
                need = max(need, 4 if c.kind == "readlane" else 2)
            if c.kind == "dpp" and sw & regs_of("exec"):
                need = max(need, 5)
            if c.kind in ("permlane", "readlane") and sw & regs_of("exec"):
                need = max(need, 4)
            if c.kind == "salu" and sw & c.rd:
                need = max(need, 1)
    if p.kind == "salu" and ("s", 124) in p.wr:
        if c.kind == "dma" or "addtid" in c.mn:
            need = max(need, 1)
    if p.kind == "store128":
        data = regs_of(p.ops[0]) if p.mn.startswith("buffer") else regs_of(p.ops[1])
        if data & c.wr:
            need = max(need, 2 if cv or c.kind == "mfma" else 1)
    return need


class Asm:
    def __init__(self):
        self.ins = []

    def __call__(self, text):
        for line in text.strip("\n").split("\n"):
            if line.strip():
                self.ins.append(Inst(line.strip().replace(" lds sc1", " sc1 lds")))

    def label(self, name):
        self.ins.append(Inst(name + ":"))

    def extend(self, lst):
        for x in lst:
            self(x)

    def pad_hazards(self):
        LOOK = 22
        ENDS = ("s_branch", "s_endpgm")

        def deficit(seq, idx, dist, c, fwd, seen):
            best = 0
            while idx >= 0 and dist < LOOK:
                p = seq[idx]
                if p.kind == "label":
                    for b in fwd.get(p.label, ()):
                        if (b, dist) not in seen:
                            seen.add((b, dist))
                            best = max(best, deficit(seq, b, dist, c, fwd, seen))
                    if idx > 0 and seq[idx - 1].mn in ENDS:
                        break
                    idx -= 1
                    continue
                if p.kind == "dir":
                    idx -= 1
                    continue
                best = max(best, required(p, c) - dist)
                dist += p.nop if p.nop else 1
                idx -= 1
            return best

        def nops(k):
            r = []
            while k > 0:
                n = min(k, 16)
                r.append(Inst(f"s_nop {n - 1}"))
                k -= n
            return r

        out, fwd = [], {}
        for c in self.ins:
            if c.kind not in ("label", "dir"):
                d = deficit(out, len(out) - 1, 0, c, fwd, set())
                out.extend(nops(d))
            out.append(c)
            if c.mn.startswith(("s_cbranch", "s_branch")):
                fwd.setdefault(c.ops[0], []).append(len(out) - 1)
        while True:
            labels = {x.label: i for i, x in enumerate(out) if x.label}
            allb = {}
            for i, x in enumerate(out):
                if x.mn.startswith(("s_cbranch", "s_branch")):
                    allb.setdefault(x.ops[0], []).append(i)
            fix = None
            for name, bs in allb.items():
                L = labels[name]
                for b in bs:
                    if b < L:
                        continue
                    dist, worst = 0, 0
                    for c in out[L + 1:L + 1 + 3 * LOOK]:
                        if c.kind in ("label", "dir"):
                            continue
                        if dist >= LOOK:
                            break
                        worst = max(worst, deficit(out, b, dist, c, allb, set()))
                        dist += c.nop if c.nop else 1
                        if c.mn in ENDS:
                            break
                    if worst > 0:
                        fix = (b, worst)
                        break
                if fix:
                    break
            if not fix:
                break
            out[fix[0]:fix[0]] = nops(fix[1])
        self.ins = out

    def text(self):
        lines = []
        for x in self.ins:
            if x.kind == "label":
                lines.append(x.text)
            else:
                lines.append("    " + x.text)
        return "\n".join(lines) + "\n"


def interleave(spine, fillers, lead=0, per_gap=None):
    out = []
    n = len(spine)
    m = len(fillers)
    k = 0
    for i, s in enumerate(spine):
        out.append(s)
        if per_gap is not None:
            tgt = min(m, k + per_gap)
        else:
            tgt = (m * (i + 1) + n - 1) // n if i >= lead else 0
            if lead:
                tgt = 0 if i < lead else (m * (i + 1 - lead) + (n - lead) - 1) // (n - lead)
        while k < tgt:
            f = fillers[k]
            if isinstance(f, (tuple, list)):
                out.extend(f)
            else:
                out.append(f)
            k += 1
    while k < m:
        f = fillers[k]
        if isinstance(f, (tuple, list)):
            out.extend(f)
        else:
            out.append(f)
        k += 1
    return out
```

```python
import math
import struct

from asmdsl import Asm, interleave

KA_X, KA_WQ, KA_WK, KA_WV, KA_WO, KA_BX, KA_W1, KA_B1, KA_W2, KA_B2, KA_OUT, KA_DBG, KA_WS = [8 * i for i in range(13)]

MB = 1 << 20
WS_BYTES = 256 * MB
WS_XN = 0
WS_QF = 4 * MB
WS_KF = 8 * MB
WS_VF = 8 * MB + 128 * 1024
WS_WKV = 9 * MB
WS_HF = 16 * MB
WS_OF = 32 * MB
WS_FP = 40 * MB

QSCALE = math.log2(math.e) / math.sqrt(32.0)


def f32bits(x):
    return struct.unpack("<I", struct.pack("<f", x))[0]


def vr(base, n=1):
    return f"v{base}" if n == 1 else f"v[{base}:{base + n - 1}]"


def ar(base, n=1):
    return f"a{base}" if n == 1 else f"a[{base}:{base + n - 1}]"


def sr(base, n=1):
    return f"s{base}" if n == 1 else f"s[{base}:{base + n - 1}]"


def kernel_header(name):
    return f""".globl {name}
.p2align 8
.type {name},@function
{name}:
"""


def kernel_desc(name, vgpr, agpr=0, sgpr=102):
    acc = (vgpr + 3) // 4 * 4
    nfv = acc + agpr if agpr else vgpr
    return f""".amdhsa_kernel {name}
  .amdhsa_next_free_vgpr {nfv}
  .amdhsa_next_free_sgpr {sgpr}
  .amdhsa_accum_offset {acc}
  .amdhsa_group_segment_fixed_size 0
  .amdhsa_kernarg_size 104
  .amdhsa_user_sgpr_count 2
  .amdhsa_user_sgpr_kernarg_segment_ptr 1
  .amdhsa_system_sgpr_workgroup_id_x 1
  .amdhsa_float_denorm_mode_32 3
.end_amdhsa_kernel
"""


def srd(a, d, base_lo, base_hi, nbytes):
    if f"s{d}" != base_lo:
        a(f"s_mov_b32 s{d}, {base_lo}")
    a(f"s_and_b32 s{d + 1}, {base_hi}, 0xffff")
    a(f"s_mov_b32 s{d + 2}, {nbytes}")
    a(f"s_mov_b32 s{d + 3}, 0x00020000")


import os
STAMP = int(os.environ.get("STAMP", "0"))
WS_STAMP = 200 * MB


def stamp(a, idx, sbase=90):
    if STAMP:
        a(f"s_memtime {sr(sbase + 2 * idx, 2)}")
        if idx == 0:
            a(f"s_memrealtime {sr(sbase - 2, 2)}")


def stamp_store(a, n, wssrd, region=0, sbase=90, waves=4):
    if not STAMP:
        return
    a("s_waitcnt vmcnt(0) lgkmcnt(0)")
    a(f"s_memtime {sr(sbase + 2 * n, 2)}")
    a(f"s_memrealtime {sr(sbase - 4, 2)}")
    a("s_waitcnt lgkmcnt(0)")
    a("v_lshrrev_b32 v1, 6, v0")
    a(f"s_mul_i32 s3, s2, {waves}")
    a("v_add_u32 v1, s3, v1")
    a("v_lshlrev_b32 v1, 5, v1")
    a(f"s_mov_b32 s3, {WS_STAMP + region * MB}")
    for i in range(n + 1):
        a(f"v_mov_b32 v2, s{sbase + 2 * i}")
        a(f"buffer_store_dword v2, v1, {sr(wssrd, 4)}, s3 offen offset:{4 * i}")
    a(f"v_mov_b32 v2, s{sbase - 2}")
    a(f"buffer_store_dword v2, v1, {sr(wssrd, 4)}, s3 offen offset:24")
    a(f"v_mov_b32 v2, s{sbase - 4}")
    a(f"buffer_store_dword v2, v1, {sr(wssrd, 4)}, s3 offen offset:28")
```

```python
import sys, importlib
sys.path.insert(0, "gen")
from common import *

HEAD = open("recurrent_scan__grouped_kv_mqa__dense_activation_squared_relu__prompt.s.ref").read().split("; Override launch")[0]

def generate(mods, out):
    launches, bodies, descs = [], [], []
    for m in mods:
        mod = importlib.import_module(m)
        b, d = mod.build()
        launches.append(f"; @launch kernel={mod.NAME} grid=({mod.GRID},1,1) block=({mod.BLOCK},1,1) lds={mod.LDS}")
        bodies.append(b); descs.append(d)
    txt = HEAD + "\n".join(launches) + "\n" + '.amdgcn_target "amdgcn-amd-amdhsa--gfx950"\n.text\n' + "\n".join(bodies)
    txt += '.section .rodata,"a"\n' + "".join(".p2align 6\n" + d for d in descs)
    open(out, "w").write(txt)

if __name__ == "__main__":
    mods = sys.argv[2:]
    generate(mods, sys.argv[1])
```

```python
import math
import struct

from asmdsl import Asm, interleave

KA_X, KA_WQ, KA_WK, KA_WV, KA_WO, KA_BX, KA_W1, KA_B1, KA_W2, KA_B2, KA_OUT, KA_DBG, KA_WS = [8 * i for i in range(13)]

MB = 1 << 20
WS_BYTES = 256 * MB
WS_XN = 0
WS_QF = 4 * MB
WS_KF = 8 * MB
WS_VF = 8 * MB + 128 * 1024
WS_WKV = 9 * MB
WS_HF = 16 * MB
WS_OF = 32 * MB
WS_FP = 40 * MB

WS_FLAG = 10 * MB
FLAG_BYTES = 65536

QSCALE = math.log2(math.e) / math.sqrt(32.0)


def f32bits(x):
    return struct.unpack("<I", struct.pack("<f", x))[0]


def vr(base, n=1):
    return f"v{base}" if n == 1 else f"v[{base}:{base + n - 1}]"


def ar(base, n=1):
    return f"a{base}" if n == 1 else f"a[{base}:{base + n - 1}]"


def sr(base, n=1):
    return f"s{base}" if n == 1 else f"s[{base}:{base + n - 1}]"


def kernel_header(name):
    return f""".globl {name}
.p2align 8
.type {name},@function
{name}:
"""


def kernel_desc(name, vgpr, agpr=0, sgpr=102):
    acc = (vgpr + 3) // 4 * 4
    nfv = acc + agpr if agpr else vgpr
    return f""".amdhsa_kernel {name}
  .amdhsa_next_free_vgpr {nfv}
  .amdhsa_next_free_sgpr {sgpr}
  .amdhsa_accum_offset {acc}
  .amdhsa_group_segment_fixed_size 0
  .amdhsa_kernarg_size 104
  .amdhsa_user_sgpr_count 2
  .amdhsa_user_sgpr_kernarg_segment_ptr 1
  .amdhsa_system_sgpr_workgroup_id_x 1
  .amdhsa_float_denorm_mode_32 3
.end_amdhsa_kernel
"""


def srd(a, d, base_lo, base_hi, nbytes):
    if f"s{d}" != base_lo:
        a(f"s_mov_b32 s{d}, {base_lo}")
    a(f"s_and_b32 s{d + 1}, {base_hi}, 0xffff")
    a(f"s_mov_b32 s{d + 2}, {nbytes}")
    a(f"s_mov_b32 s{d + 3}, 0x00020000")


import os
STAMP = int(os.environ.get("STAMP", "0"))
WS_STAMP = 200 * MB


def stamp(a, idx, sbase=90):
    if STAMP:
        a(f"s_memtime {sr(sbase + 2 * idx, 2)}")
        if idx == 0:
            a(f"s_memrealtime {sr(sbase - 2, 2)}")


def stamp_store(a, n, wssrd, region=0, sbase=90, waves=4):
    if not STAMP:
        return
    a("s_waitcnt vmcnt(0) lgkmcnt(0)")
    a(f"s_memtime {sr(sbase + 2 * n, 2)}")
    a(f"s_memrealtime {sr(sbase - 4, 2)}")
    a("s_waitcnt lgkmcnt(0)")
    a("v_lshrrev_b32 v1, 6, v0")
    a(f"s_mul_i32 s3, s2, {waves}")
    a("v_add_u32 v1, s3, v1")
    a("v_lshlrev_b32 v1, 5, v1")
    a(f"s_mov_b32 s3, {WS_STAMP + region * MB}")
    for i in range(n + 1):
        a(f"v_mov_b32 v2, s{sbase + 2 * i}")
        a(f"buffer_store_dword v2, v1, {sr(wssrd, 4)}, s3 offen offset:{4 * i}")
    a(f"v_mov_b32 v2, s{sbase - 2}")
    a(f"buffer_store_dword v2, v1, {sr(wssrd, 4)}, s3 offen offset:24")
    a(f"v_mov_b32 v2, s{sbase - 4}")
    a(f"buffer_store_dword v2, v1, {sr(wssrd, 4)}, s3 offen offset:28")


def touch(a, ka_list, s_tmp, v_idx, v_dst, wg="s2", log2_threads=8, passes=1, nthreads_total=65536):
    n = 0
    for i, (ka, nb) in enumerate(ka_list):
        a(f"s_load_dwordx2 {sr(s_tmp + 4 * i, 2)}, s[0:1], {ka}")
    a(f"s_lshl_b32 s{s_tmp + 4 * len(ka_list)}, {wg}, {log2_threads + 7}")
    a(f"v_lshlrev_b32 v{v_idx}, 7, v0")
    a(f"v_add_u32 v{v_idx}, s{s_tmp + 4 * len(ka_list)}, v{v_idx}")
    a("s_waitcnt lgkmcnt(0)")
    for i, (ka, nb) in enumerate(ka_list):
        d = s_tmp + 4 * i
        srd(a, d, f"s{d}", f"s{d + 1}", nb)
        off = 0
        while off < nb:
            a(f"s_mov_b32 s{s_tmp + 4 * len(ka_list)}, {off}")
            a(f"buffer_load_dword v{v_dst}, v{v_idx}, {sr(d, 4)}, s{s_tmp + 4 * len(ka_list)} offen")
            off += nthreads_total * 128
            n += 1
    return n
```
